```python
import torch

def _softmax(x, axis=-1):
    return torch.softmax(x, dim=axis)
def _gelu(x):
    return torch.nn.functional.gelu(x, approximate="tanh")
def _silu(x):
    return torch.nn.functional.silu(x)
def _sigmoid(x):
    return torch.sigmoid(x)
def _layernorm(x, axis=-1, eps=1e-5):
    m = x.mean(dim=axis, keepdim=True)
    v = x.var(dim=axis, keepdim=True, unbiased=False)
    return (x - m) / torch.sqrt(v + eps)
def _scatter_add(tgt, idx, src, axis=0):
    return tgt.clone().index_add_(axis, idx, src)
def _segment_sum(src, seg, n):
    out = torch.zeros((n,) + src.shape[1:], dtype=src.dtype)
    return out.index_add_(0, seg, src)
def _pad(x, pw):
    flat = tuple(v for pair in reversed(pw) for v in pair)
    return torch.nn.functional.pad(x, flat)

kernel_name = 'parallel_sum__ssm_conv_s4d__dense_activation_relu__prompt'

def setup_inputs():

    _w = (lambda a: (lambda t: t.to(torch.bfloat16) if t.is_floating_point() else t)(torch.as_tensor(a)))
    def _A_setup():
        Bsz, L, D, N = 1, 2048, 512, 128
        return {
            "u": _w((lambda *s: torch.randn(*s, dtype=torch.bfloat16) * 0.05)(Bsz, L, D)),
            "log_A_real": _w((lambda *s: torch.randn(*s, dtype=torch.bfloat16) * 3.2)(D, N) * 0.5),
            "A_imag": _w((lambda *s: torch.randn(*s, dtype=torch.bfloat16) * 0.1)(D, N) * 3.14),
            "C_real": _w((lambda *s: torch.randn(*s, dtype=torch.bfloat16) * 1.6)(D, N) / N ** 0.5),
            "C_imag": _w((lambda *s: torch.randn(*s, dtype=torch.bfloat16) * 1.6)(D, N) / N ** 0.5),
            "log_dt": _w((lambda *s: torch.randn(*s, dtype=torch.bfloat16) * 0.1)(D) * 0.5 - 4.0),
            "D_skip": _w((lambda *s: torch.randn(*s, dtype=torch.bfloat16) * 0.2)(D)),
        }
    _A_in = _A_setup()

    def _B_setup():
        B, S, D, Dff = 1, 2048, 512, 1792
        return {
            "x": _w((lambda *s: torch.randn(*s, dtype=torch.bfloat16) * 0.05)(B, S, D)),
            "w1": _w((lambda *s: torch.randn(*s, dtype=torch.bfloat16) * 0.05)(D, Dff)),
            "w2": _w((lambda *s: torch.randn(*s, dtype=torch.bfloat16) * 0.05)(Dff, D)),
        }
    _B_in = _B_setup()

    return {
        "A_u": _A_in["u"],
        "A_log_A_real": _A_in["log_A_real"],
        "A_A_imag": _A_in["A_imag"],
        "A_C_real": _A_in["C_real"],
        "A_C_imag": _A_in["C_imag"],
        "A_log_dt": _A_in["log_dt"],
        "A_D_skip": _A_in["D_skip"],
        "B_x": _B_in["x"],
        "B_w1": _B_in["w1"],
        "B_w2": _B_in["w2"],
    }

def reference(A_u, A_log_A_real, A_A_imag, A_C_real, A_C_imag, A_log_dt, A_D_skip, B_x, B_w1, B_w2):
    def _A_ref(u, log_A_real, A_imag, C_real, C_imag, log_dt, D_skip):
        L = u.shape[1]
        dt = torch.exp(log_dt)
        A = -torch.exp(log_A_real) + 1j * A_imag
        C = (C_real + 1j * C_imag) * dt[:, None]
        pos = (lambda x, dt: x.to(dt))(torch.arange(L), log_dt.dtype)
        P = torch.exp((A * dt[:, None])[:, :, None] * pos[None, None, :])
        K = 2.0 * torch.einsum("dn,dnl->dl", C, P).real
        L2 = 2 * L
        u_t = (lambda x, *d: x.permute(*d))(u, 0, 2, 1)
        Kf = (lambda x, *a, **k: torch.fft.rfft(x.float(), *a, **k))(K, L2)
        Uf = (lambda x, *a, **k: torch.fft.rfft(x.float(), *a, **k))(u_t, L2)
        y = (lambda x, *a, **k: torch.fft.irfft(x, *a, **k).to(torch.bfloat16))(Uf * Kf[None, :, :], L2)[:, :, :L]
        y = (lambda x, *d: x.permute(*d))(y, 0, 2, 1)
        return y + u * D_skip[None, None, :]

    def _B_ref(x, w1, w2):
        h = torch.einsum("bsd,df->bsf", x, w1)
        zero = torch.zeros_like(h)
        h = torch.maximum(h, zero)
        return torch.einsum("bsf,fd->bsd", h, w2)

    x = A_u
    xn = _layernorm(x, axis=-1)
    return x + _A_ref(xn, A_log_A_real, A_A_imag, A_C_real, A_C_imag, A_log_dt, A_D_skip) + _B_ref(xn, B_w1, B_w2)
```

```python
import re

REG_RE = re.compile(r'(?<![\w.])([vsa])\[(\d+):(\d+)\]|(?<![\w.\[])([vsa])(\d+)(?![\w\[:])|(?<![\w])(vcc|exec|m0|scc)(?![\w])')

def regs_of(op):
    out = []
    for m in REG_RE.finditer(op):
        if m.group(1):
            out += [(m.group(1), i) for i in range(int(m.group(2)), int(m.group(3)) + 1)]
        elif m.group(4):
            out.append((m.group(4), int(m.group(5))))
        else:
            out.append((m.group(6), 0))
    return out

TRANS = ('v_exp_f32', 'v_log_f32', 'v_rcp_f32', 'v_rsq_f32', 'v_sqrt_f32', 'v_sin_f32', 'v_cos_f32', 'v_rcp_iflag_f32')
RMW = ('v_fmac_f32', 'v_dot2c_f32_bf16', 'v_pk_fmac_f16', 'v_writelane_b32')

def split_ops(rest):
    ops, depth, cur = [], 0, ''
    for ch in rest:
        if ch == '[' or ch == '(': depth += 1
        if ch == ']' or ch == ')': depth -= 1
        if ch == ',' and depth == 0:
            ops.append(cur.strip()); cur = ''
        else:
            cur += ch
    if cur.strip(): ops.append(cur.strip())
    return ops

class I:
    def __init__(self, text):
        self.text = text
        t = text.split(';')[0].strip()
        parts = t.split(None, 1)
        self.mn = parts[0]
        rest = parts[1] if len(parts) > 1 else ''
        ops = split_ops(rest)
        self.mods = ''
        if ops:
            last = ops[-1].split(None, 1)
            if len(last) > 1 and not last[0].endswith(('(',)):
                ops[-1] = last[0]; self.mods = last[1]
        self.ops = ops
        mn = self.mn
        self.kind = 'other'
        self.w, self.r = [], []
        self.srcc = []; self.ab = []
        R = lambda i: regs_of(ops[i]) if i < len(ops) else []
        if mn.startswith('v_mfma'):
            self.kind = 'mfma'
            self.passes = 8 if '32x32x16' in mn else 4 if '16x16x32' in mn else 16
            self.w = R(0); self.ab = R(1) + R(2); self.srcc = R(3); self.r = self.ab + self.srcc
        elif mn.startswith('v_'):
            self.kind = 'valu'
            base = mn.replace('_e32', '').replace('_e64', '').replace('_dpp', '').replace('_sdwa', '')
            self.base = base
            self.trans = base in TRANS
            self.dpp = ('_dpp' in mn) or ('row_' in self.mods) or ('quad_perm' in self.mods) or ('wave_' in self.mods) or ('row_' in rest) or ('quad_perm' in rest)
            self.dot = base.startswith('v_dot')
            if base.startswith('v_permlane') and 'swap' in base:
                self.w = R(0) + R(1); self.r = R(0) + R(1)
            elif base in ('v_add_co_u32', 'v_sub_co_u32', 'v_subrev_co_u32', 'v_addc_co_u32', 'v_subb_co_u32', 'v_mad_u64_u32', 'v_div_scale_f32'):
                self.w = R(0) + R(1); self.r = sum((R(i) for i in range(2, len(ops))), [])
            else:
                self.w = R(0); self.r = sum((R(i) for i in range(1, len(ops))), [])
                if base in RMW or self.dpp: self.r += R(0)
                if base == 'v_cndmask_b32' and len(ops) == 3: self.r.append(('vcc', 0))
            self.opsel = ('op_sel' in rest and not base.startswith('v_pk_')) or 'dst_sel' in rest
        elif mn.startswith('ds_'):
            self.kind = 'ds'
            if mn.startswith(('ds_read', 'ds_bpermute', 'ds_permute', 'ds_swizzle')) or '_rtn' in mn:
                self.w = R(0); self.r = sum((R(i) for i in range(1, len(ops))), [])
                if 'd16' in mn: self.r += R(0)
            else:
                self.r = sum((R(i) for i in range(len(ops))), [])
        elif mn.startswith(('buffer_', 'global_')):
            self.kind = 'vmem'
            self.lds = bool(re.search(r'\blds\b', self.mods)) or '_lds_' in mn
            allr = sum((R(i) for i in range(len(ops))), [])
            if 'load' in mn and not self.lds:
                self.w = R(0); self.r = sum((R(i) for i in range(1, len(ops))), [])
                if 'd16' in mn: self.r += R(0)
            elif 'atomic' in mn and 'sc0' in self.mods:
                self.w = R(0); self.r = allr
            else:
                self.r = allr
            if self.lds: self.r.append(('m0', 0))
            self.wide_store = ('store' in mn) and ('x4' in mn or 'x3' in mn)
            self.sdata = R(0) if mn.startswith('buffer_store') else (R(1) if mn.startswith('global_store') else [])
        elif mn.startswith('s_'):
            self.kind = 'salu'
            if mn in ('s_nop', 's_waitcnt', 's_barrier', 's_endpgm', 's_sleep', 's_setprio', 's_branch') or mn.startswith('s_cbranch'):
                pass
            elif mn.startswith('s_cmp') or mn.startswith('s_bitcmp'):
                self.r = sum((R(i) for i in range(len(ops))), [])
            else:
                self.w = R(0); self.r = sum((R(i) for i in range(1, len(ops))), [])
                if 'saveexec' in mn: self.w.append(('exec', 0))
        self.states = 1
        if mn == 's_nop': self.states = int(ops[0], 0) + 1

def fix_hazards(lines):
    out = []
    pos = 0
    last_w = {}
    last_mfma_c = {}
    last_store = {}
    for ln in lines:
        s = ln.split(';')[0].strip()
        if not s or s.endswith(':') or s.startswith('.'):
            out.append(ln); continue
        ins = I(s)
        need = 0
        def req(p, n):
            nonlocal need
            need = max(need, n - (pos - p - 1))
        for r in ins.r:
            if r not in last_w: continue
            p, w = last_w[r]
            if w.kind == 'valu':
                if r[0] in 'va':
                    if ins.kind == 'mfma': req(p, 2)
                    if ins.kind == 'valu':
                        if w.trans: req(p, 1)
                        if w.opsel: req(p, 1)
                        if ins.dpp: req(p, 2)
                        if ins.base.startswith('v_permlane'): req(p, 2)
                        if ins.base in ('v_readlane_b32', 'v_readfirstlane_b32'): req(p, 1)
                        if w.dot and not (ins.base == w.base and r in regs_of(ins.ops[-1] if ins.base != 'v_dot2c_f32_bf16' else ins.ops[0]) and r not in regs_of(ins.ops[1]) + regs_of(ins.ops[2])): req(p, 3)
                    elif w.dot: req(p, 3)
                    elif w.trans: req(p, 1)
                else:
                    if ins.kind == 'vmem': req(p, 5)
                    elif ins.kind == 'valu':
                        req(p, 4 if ins.base in ('v_readlane_b32', 'v_writelane_b32') else 2)
                    elif ins.kind == 'mfma': req(p, 4)
                    else: req(p, 1)
            elif w.kind == 'mfma':
                n_ab = {4: 8, 8: 12, 16: 20}[w.passes]
                if ins.kind == 'mfma':
                    if r in ins.ab: req(p, n_ab)
                    if r in ins.srcc:
                        if not (ins.srcc == w.w and ins.passes == w.passes): req(p, {4: 6, 8: 10, 16: 18}[w.passes])
                else:
                    req(p, n_ab)
            elif w.kind == 'salu':
                if r == ('m0', 0) and ins.kind == 'vmem': req(p, 1)
        for r in ins.w:
            if r in last_w:
                p, w = last_w[r]
                if w.kind == 'mfma' and ins.kind != 'mfma': req(p, {4: 8, 8: 12, 16: 20}[w.passes])
                if w.kind == 'mfma' and ins.kind == 'mfma' and not (ins.srcc == w.w and ins.w == w.w): req(p, {4: 6, 8: 10, 16: 18}[w.passes])
                if w.kind == 'valu' and w.dot and not (ins.kind == 'valu' and ins.base == w.base): req(p, 3)
            if r in last_mfma_c and ins.kind != 'mfma':
                p, ps = last_mfma_c[r]; req(p, {4: 3, 8: 7, 16: 15}[ps])
            if r in last_store:
                req(last_store[r], 2 if ins.kind == 'valu' else 1)
        while need > 0:
            k = min(need, 16)
            out.append(f"  s_nop {k-1}")
            pos += k; need -= k
        out.append(ln)
        for r in ins.w: last_w[r] = (pos, ins)
        if ins.kind == 'mfma':
            for r in ins.srcc: last_mfma_c[r] = (pos, ins.passes)
        if ins.kind == 'vmem' and ins.wide_store:
            for r in ins.sdata: last_store[r] = pos
        pos += ins.states
    return out

class Prog:
    def __init__(self):
        self.L = []
        self.vm = []
        self.lg = []
        self.uid = 0
    def __call__(self, s):
        for l in s.strip('\n').split('\n'):
            self.L.append(l if l.rstrip().endswith(':') or l.startswith('.') else '  ' + l.strip())
    def label(self, n): self.L.append(n + ':')
    def newlabel(self, p='L'):
        self.uid += 1; return f"{p}_{self.uid}"
    def vmem(self, s, tag=None):
        self(s); self.vm.append(tag)
    def lds(self, s, tag=None):
        self(s); self.lg.append(tag)
    def _n(self, q, tag):
        idx = [i for i, t in enumerate(q) if t == tag]
        if not idx: return None
        return len(q) - 1 - idx[-1]
    def wait(self, vm=None, lg=None):
        parts = []
        if vm is not None:
            n = 0 if vm == 'all' else self._n(self.vm, vm)
            if n is not None:
                assert n <= 63, n
                parts.append(f"vmcnt({n})"); self.vm = self.vm[len(self.vm) - n:] if n else []
        if lg is not None:
            n = 0 if lg == 'all' else self._n(self.lg, lg)
            if n is not None:
                n = min(n, 15)
                parts.append(f"lgkmcnt({n})"); self.lg = self.lg[len(self.lg) - n:] if n else []
        if parts: self("s_waitcnt " + " ".join(parts))
    def text(self):
        return "\n".join(fix_hazards(self.L)) + "\n"

G128 = [list(range(0,4))+list(range(12,16))+list(range(20,28)), list(range(4,12))+list(range(16,20))+list(range(28,32))]
G128 += [[x+32 for x in g] for g in G128]
def conflicts(addrs, kind):
    if kind == 'r128': groups, nb, w = G128, 64, 4
    elif kind in ('r64', 'tr'): groups, nb, w = [list(range(32)), list(range(32, 64))], 64, 2
    elif kind == 'r32': groups, nb, w = [list(range(32)), list(range(32, 64))], 32, 1
    elif kind == 'w128': groups, nb, w = [list(range(8*i, 8*i+8)) for i in range(8)], 32, 4
    elif kind == 'w64': groups, nb, w = [list(range(16*i, 16*i+16)) for i in range(4)], 32, 2
    elif kind == 'w32': groups, nb, w = [list(range(32)), list(range(32, 64))], 32, 1
    extra = 0
    for g in groups:
        banks = {}
        for l in g:
            for k in range(w):
                d = addrs[l] // 4 + k
                banks.setdefault(d % nb, set()).add(d)
        extra += max(len(v) for v in banks.values()) - 1
    return extra
```

```python
import sys
from asmlib import Prog

NAME = "parallel_sum__ssm_conv_s4d__dense_activation_relu__prompt"
H_OFF, H_SZ = 0, 64 * 112 * 1024
XT_OFF, XT_SZ = 0x800000, 0x200000
Y_OFF, Y_SZ = 0xA00000, 0x200000
KQ_OFF, KQ_SZ = 0xC00000, 512 * 1536
RS_OFF, RS_SZ = 0xD00000, 8192
FL_OFF, FL_SZ = 0xD10000, 1024
LDS = 81920

PX, PLA, PAI, PCR, PCI, PDT, PDS, PBX, PW1, PW2, POUT, PDBG, PWS = range(16, 42, 2)

def srd(p, d, ptr, size, off=0):
    if off:
        p(f"s_add_u32 s{d}, s{ptr}, {off}\ns_addc_u32 s{d+1}, s{ptr+1}, 0\ns_and_b32 s{d+1}, s{d+1}, 0xffff")
    else:
        p(f"s_mov_b32 s{d}, s{ptr}\ns_and_b32 s{d+1}, s{ptr+1}, 0xffff")
    p(f"s_mov_b32 s{d+2}, {size}\ns_mov_b32 s{d+3}, 0x20000")

def entry(p, name, side_label, end_label):
    p(f".globl {name}\n.p2align 8\n.type {name},@function")
    p.label(name)
    p(f"s_cmp_ge_u32 s2, 512\ns_cbranch_scc1 {end_label}")
    p("s_load_dwordx16 s[16:31], s[0:1], 0\ns_load_dwordx8 s[32:39], s[0:1], 64\ns_load_dwordx2 s[40:41], s[0:1], 96")
    p("v_lshrrev_b32 v1, 6, v0")
    p("s_and_b32 s3, s2, 7")
    p("s_bfe_u32 s4, s2, 0x50003")
    p("v_readfirstlane_b32 s7, v1")
    p("v_and_b32 v1, 63, v0")
    p(f"s_cmp_ge_u32 s2, 256\ns_cbranch_scc1 {side_label}")

def V(a, n=1): return f"v{a}" if n == 1 else f"v[{a}:{a+n-1}]"

def gemm1(p, end_label):
    SX, SW, SH = 44, 48, 52
    vXD, vWD, vXA, vAA, vMS, vONE, vA, vX, vCS, vACC = 2, 6, 8, 12, 16, 20, 24, 56, 88, 104
    XB = 49152
    p(f"s_cmp_ge_u32 s4, 28\ns_cbranch_scc1 {end_label}")
    p("s_cmp_ge_u32 s4, 14\ns_cselect_b32 s5, 1, 0\ns_cselect_b32 s6, 14, 0\ns_sub_u32 s4, s4, s6")
    p("s_lshl_b32 s6, s3, 1\ns_add_u32 s6, s6, s5")
    p("v_lshrrev_b32 v24, 3, v1\nv_lshlrev_b32 v24, 12, v24")
    p("v_bfe_u32 v25, v1, 4, 1\nv_lshlrev_b32 v25, 2, v25\nv_and_b32 v26, 7, v1\nv_xor_b32 v25, v25, v26")
    p(f"v_lshl_add_u32 v{vXD}, v25, 4, v24")
    for i in range(1, 4): p(f"v_xor_b32 v{vXD+i}, {i*16}, v{vXD}")
    p("v_lshrrev_b32 v24, 4, v1\nv_and_b32 v25, 15, v1\nv_lshlrev_b32 v26, 2, v24\nv_xor_b32 v25, v25, v26")
    p(f"v_mul_u32_u24 v24, 3584, v24\nv_lshl_add_u32 v{vWD}, v25, 4, v24")
    p("s_lshl_b32 s8, s6, 2\ns_add_u32 s8, s8, s7")
    p("s_lshl_b32 s9, s8, 15")
    p("s_mul_i32 s10, s7, 28672\ns_lshl_b32 s11, s4, 8\ns_add_u32 s10, s10, s11")
    p(f"s_lshl_b32 s11, s7, 13\ns_add_u32 s11, s11, {XB}")
    p("s_lshl_b32 s12, s7, 11")
    p("s_waitcnt lgkmcnt(0)")
    srd(p, SX, PX, 2048 * 1024); srd(p, SW, PW1, 512 * 3584)
    def cc(c, dst):
        p(f"s_add_u32 s{dst}, s3, {c}\ns_and_b32 s{dst}, s{dst}, 7")
    def issue_x(c):
        cc(c, 13)
        p(f"s_lshl_b32 s13, s13, 7\ns_add_u32 s13, s13, s9\ns_add_u32 m0, s11, {(c & 1) * 4096}")
        for i in range(4):
            p.vmem(f"buffer_load_dwordx4 v{vXD+i}, s[{SX}:{SX+3}], s13 offen offset:{i*1024} lds", f"X{c}")
    def issue_w(s):
        cc(s >> 1, 13)
        p(f"s_mul_i32 s13, s13, 229376\ns_add_u32 s13, s13, s10")
        if s & 1: p("s_add_u32 s13, s13, 114688")
        p(f"s_add_u32 m0, s12, {(s % 6) * 8192}")
        p.vmem(f"buffer_load_dwordx4 v{vWD}, s[{SW}:{SW+3}], s13 offen lds", f"W{s}")
        p(f"s_add_u32 s13, s13, 14336\ns_add_u32 m0, s12, {(s % 6) * 8192 + 1024}")
        p.vmem(f"buffer_load_dwordx4 v{vWD}, s[{SW}:{SW+3}], s13 offen lds", f"W{s}")
    issue_x(0); issue_w(0); issue_w(1); issue_x(1)
    for s in range(2, 6): issue_w(s)
    p("v_and_b32 v24, 3, v1\nv_bfe_u32 v25, v1, 2, 3\nv_lshlrev_b32 v25, 7, v25\nv_lshl_add_u32 v25, v24, 10, v25")
    p("v_add_u32 v25, s11, v25")
    p("v_bfe_u32 v26, v1, 3, 1\nv_lshl_or_b32 v24, v26, 2, v24")
    p("v_lshrrev_b32 v26, 5, v1\nv_xor_b32 v24, v24, v26")
    for t in range(4):
        if t: p(f"v_xor_b32 v26, {2*t}, v24\nv_lshl_add_u32 v{vXA+t}, v26, 4, v25")
        else: p(f"v_lshl_add_u32 v{vXA}, v24, 4, v25")
    p("v_bfe_u32 v24, v1, 2, 2\nv_lshrrev_b32 v25, 5, v1\nv_lshl_add_u32 v25, v25, 3, v24\nv_lshlrev_b32 v25, 8, v25")
    p("v_and_b32 v26, 1, v1\nv_lshl_add_u32 v25, v26, 3, v25")
    p("v_bfe_u32 v26, v1, 4, 1\nv_bfe_u32 v27, v1, 1, 1\nv_lshl_add_u32 v26, v26, 1, v27\nv_lshl_add_u32 v25, v26, 4, v25")
    for sl in range(4):
        p(f"s_add_u32 s13, s7, {sl}\ns_and_b32 s13, s13, 3\nv_xor_b32 v26, s13, v24\nv_lshl_add_u32 v{vAA+sl}, v26, 6, v25")
    for i in range(4): p(f"v_mov_b32 v{vONE+i}, 0x3f803f80\nv_mov_b32 v{vMS+i}, 0")
    srd(p, SH, PWS, H_SZ, H_OFF)
    def rd_x(c):
        for t in range(4):
            p.lds(f"ds_read_b128 {V(vX + (c & 1)*16 + 4*t, 4)}, v{vXA+t} offset:{(c & 1)*4096}", f"XR{c}")
    def rd_a(T):
        s, t = T >> 1, T & 1
        for sl in range(4):
            for u in range(2):
                p.lds(f"ds_read_b64_tr_b16 {V(vA + (T & 1)*16 + 4*sl + 2*u, 2)}, v{vAA+sl} offset:{(s % 6)*8192 + (16*t + 4*u)*256}", f"R{T}")
    p.wait(vm="W0"); p("s_barrier")
    rd_x(0); rd_a(0)
    for T in range(32):
        s, c = T >> 1, T >> 2
        if T & 1 and s + 1 < 16:
            p.wait(vm=f"W{s+1}"); p("s_barrier")
            if 6 <= s + 5 <= 15: issue_w(s + 5)
        if (T + 1) % 4 == 0 and c + 1 < 8:
            p.wait(vm=f"X{c+1}"); rd_x(c + 1)
        if T + 1 < 32: rd_a(T + 1)
        p.wait(lg=f"R{T}")
        if T % 4 == 0 and c + 2 < 8: issue_x(c + 2)
        xb = vX + (c & 1) * 16 + 4 * (T & 3)
        for sl in range(4):
            ab = vA + (T & 1) * 16 + 4 * sl
            acc = V(vACC + 16*sl, 16)
            p(f"v_mfma_f32_32x32x16_bf16 {acc}, {V(ab,4)}, {V(xb,4)}, {acc if T else 0}")
            p(f"v_dot2c_f32_bf16 v{vMS+sl}, v{xb+sl}, v{vONE}")
            if sl == 0:
                p(f"v_mfma_f32_32x32x16_bf16 {V(vCS,16)}, {V(ab,4)}, {V(vONE,4)}, {V(vCS,16) if T else 0}")
    p(f"v_add_f32 v{vMS}, v{vMS}, v{vMS+1}\nv_add_f32 v{vMS+2}, v{vMS+2}, v{vMS+3}\nv_add_f32 v{vMS}, v{vMS}, v{vMS+2}")
    p(f"v_mov_b32 v{vMS+1}, v{vMS}\nv_permlane32_swap_b32 v{vMS}, v{vMS+1}\nv_add_f32 v{vMS}, v{vMS}, v{vMS+1}")
    p(f"v_mul_f32 v{vMS}, 0x3b000000, v{vMS}\nv_cvt_pk_bf16_f32 v{vMS}, v{vMS}, v{vMS}\nv_lshlrev_b32 v{vMS}, 16, v{vMS}")
    p("v_lshrrev_b32 v2, 5, v1\nv_lshlrev_b32 v2, 4, v2")
    p("s_lshl_b32 s13, s7, 7\nv_add_u32 v3, s13, v2")
    p("s_mov_b32 exec_lo, 1\ns_mov_b32 exec_hi, 1")
    for q in range(4): p.lds(f"ds_write_b128 v3, {V(vCS+4*q,4)} offset:{32*q}")
    p("s_mov_b64 exec, -1")
    p("s_mul_i32 s14, s8, 112\ns_lshl_b32 s15, s4, 3\ns_add_u32 s14, s14, s15\ns_lshl_b32 s14, s14, 10")
    p("v_lshlrev_b32 v4, 4, v1")
    p.wait(lg='all'); p("s_barrier")
    for sl in range(4):
        p(f"s_add_u32 s13, s7, {sl}\ns_and_b32 s13, s13, 3\ns_lshl_b32 s{68+sl}, s13, 11\ns_add_u32 s{68+sl}, s{68+sl}, s14\ns_lshl_b32 s13, s13, 7\nv_add_u32 v{8+sl}, s13, v2")
        for q in range(4): p.lds(f"ds_read_b128 {V(24+16*sl+4*q,4)}, v{8+sl} offset:{32*q}", f"C{sl}")
    for sl in range(4):
        p.wait(lg=f"C{sl}")
        a = vACC + 16 * sl; c = 24 + 16 * sl
        for k in range(8):
            p(f"v_pk_fma_f32 {V(a+2*k,2)}, {V(c+2*k,2)}, {V(vMS,2)}, {V(a+2*k,2)} op_sel_hi:[1,0,1] neg_lo:[0,1,0] neg_hi:[0,1,0]")
        for k in range(8):
            p(f"v_cvt_pk_bf16_f32 v{a+k}, v{a+2*k}, v{a+2*k+1}")
        for k in range(8):
            p(f"v_pk_max_i16 v{a+k}, v{a+k}, 0")
        for sp in range(2):
            p.vmem(f"buffer_store_dwordx4 {V(a+4*sp,4)}, v4, s[{SH}:{SH+3}], s{68+sl} offen offset:{sp*1024} {STORE_FLAGS}")
    p("s_endpgm"); p.vm = []; p.lg = []

STORE_FLAGS = "sc1"

def cmul(p, d, a, b):
    p(f"v_pk_mul_f32 {V(d,2)}, {V(a,2)}, {V(b,2)} op_sel:[0,0] op_sel_hi:[0,1]")
    return f"v_pk_fma_f32 {V(d,2)}, {V(a,2)}, {V(b,2)}, {V(d,2)} op_sel:[1,1,0] op_sel_hi:[1,0,1] neg_lo:[1,0,0]"

def exp_bf16(p, d, x, t0, t1):
    p(f"v_mul_f32 v{t0}, 0x3fb8aa3b, v{x}")
    p(f"v_fma_f32 v{t1}, v{x}, s80, -v{t0}")
    p(f"v_fmac_f32 v{t1}, 0x32a57060, v{x}")
    p(f"v_exp_f32 v{t0}, v{t0}")
    p(f"v_mul_f32 v{t1}, 0x3f317218, v{t1}")
    p(f"v_fmac_f32 v{t0}, v{t0}, v{t1}")
    p(f"v_cvt_pk_bf16_f32 v{d}, v{t0}, v{t0}\nv_lshlrev_b32 v{d}, 16, v{d}")

def wave_sum(p, regs):
    for m in ("row_shr:1", "row_shr:2", "row_shr:4", "row_shr:8"):
        for r in regs: p(f"v_add_f32_dpp v{r}, v{r}, v{r} {m} row_mask:0xf bank_mask:0xf")
    for r in regs: p(f"v_add_f32_dpp v{r}, v{r}, v{r} row_bcast:15 row_mask:0xa bank_mask:0xf")
    for r in regs: p(f"v_add_f32_dpp v{r}, v{r}, v{r} row_bcast:31 row_mask:0xc bank_mask:0xf")

KG_ROW, KG_WAVE = 288, 57 * 288
LNB = 4 * KG_WAVE
def side1(p):
    SX, SXT, SRS, SKQ, SP, SW2, SFL = 44, 48, 52, 56, 60, 64, 68
    p("s_lshl_b32 s5, s3, 5\ns_add_u32 s5, s5, s4")
    p("s_lshl_b32 s6, s5, 1")
    p("s_lshr_b32 s8, s7, 1\ns_add_u32 s8, s8, s6")
    p("s_lshl_b32 s9, s5, 3\ns_lshl_b32 s10, s7, 1\ns_add_u32 s9, s9, s10")
    p("s_lshl_b32 s10, s9, 10")
    p("v_lshlrev_b32 v2, 4, v1")
    p("s_and_b32 s11, s7, 1\ns_lshl_b32 s11, s11, 7\ns_lshl_b32 s12, s8, 8\ns_add_u32 s11, s11, s12")
    p("v_lshlrev_b32 v3, 1, v1")
    p("s_lshl_b32 s12, s6, 1")
    p("s_waitcnt lgkmcnt(0)")
    srd(p, SX, PX, 2048 * 1024)
    p.vmem(f"buffer_load_dwordx4 v[8:11], v2, s[{SX}:{SX+3}], s10 offen", "x")
    p.vmem(f"buffer_load_dwordx4 v[12:15], v2, s[{SX}:{SX+3}], s10 offen offset:1024", "x")
    p(f"s_load_dword s72, s[{PDT}:{PDT+1}], s12")
    for k, ptr in enumerate((PLA, PAI, PCR, PCI)):
        srd(p, SP, ptr, 131072)
        p.vmem(f"buffer_load_ushort v{4+k}, v3, s[{SP}:{SP+3}], s11 offen", "par")
    srd(p, SXT, PWS, XT_SZ, XT_OFF); srd(p, SRS, PWS, RS_SZ, RS_OFF); srd(p, SKQ, PWS, KQ_SZ, KQ_OFF)
    srd(p, SW2, PW2, 1792 * 1024); srd(p, SFL, PWS, FL_SZ, FL_OFF)
    p("v_mov_b32 v16, 0x3f803f80\nv_mov_b32 v18, 0\nv_mov_b32 v19, 0\ns_mov_b32 s80, 0x3fb8aa3b\ns_mov_b32 s81, 0xffff0000")
    p("s_lshl_b32 s13, s5, 2\ns_mov_b64 exec, 1")
    p.vmem(f"buffer_store_dword v18, off, s[{SFL}:{SFL+3}], s13")
    p("s_mov_b64 exec, -1")
    p.wait(vm="x")
    for k in range(4):
        p(f"v_dot2c_f32_bf16 v18, v{8+k}, v16\nv_dot2c_f32_bf16 v19, v{12+k}, v16")
    wave_sum(p, (18, 19))
    p("v_mul_f32 v18, 0x3b000000, v18\nv_mul_f32 v19, 0x3b000000, v19\nv_cvt_pk_bf16_f32 v20, v18, v19")
    p("v_lshlrev_b32 v21, 16, v20\nv_and_b32 v20, s81, v20")
    p("v_sub_f32 v18, v18, v21\nv_sub_f32 v19, v19, v20")
    p("v_readlane_b32 s74, v21, 63\nv_readlane_b32 s76, v20, 63")
    for r in range(2):
        for k in range(4):
            p(f"v_lshlrev_b32 v{24+8*r+2*k}, 16, v{8+4*r+k}\nv_and_b32 v{25+8*r+2*k}, s81, v{8+4*r+k}")
    for r in range(2):
        for k in range(4):
            p(f"v_pk_add_f32 {V(24+8*r+2*k,2)}, {V(24+8*r+2*k,2)}, s[{74+2*r}:{75+2*r}] op_sel_hi:[1,0] neg_lo:[0,1] neg_hi:[0,1]")
    for k in range(4):
        for r in range(2):
            e = V(24+8*r+2*k, 2)
            if k == 0: p(f"v_pk_mul_f32 {V(40+2*r,2)}, {e}, {e}")
            else: p(f"v_pk_fma_f32 {V(40+2*r,2)}, {e}, {e}, {V(40+2*r,2)}")
    p("v_add_f32 v40, v40, v41\nv_add_f32 v42, v42, v43")
    for r in range(2):
        for k in range(4): p(f"v_cvt_pk_bf16_f32 v{8+4*r+k}, v{24+8*r+2*k}, v{25+8*r+2*k}")
    wave_sum(p, (40, 42))
    p("v_mul_f32 v40, 0x3b000000, v40\nv_mul_f32 v42, 0x3b000000, v42")
    p("v_fma_f32 v40, -v18, v18, v40\nv_fma_f32 v42, -v19, v19, v42")
    p("v_max_f32 v40, 0, v40\nv_max_f32 v42, 0, v42")
    p("v_cvt_pk_bf16_f32 v20, v40, v42\nv_lshlrev_b32 v40, 16, v20\nv_and_b32 v42, s81, v20")
    p("v_add_f32 v40, 0x3727c5ac, v40\nv_add_f32 v42, 0x3727c5ac, v42")
    p("v_cvt_pk_bf16_f32 v20, v40, v42\nv_lshlrev_b32 v40, 16, v20\nv_and_b32 v42, s81, v20")
    p("v_sqrt_f32 v40, v40\nv_sqrt_f32 v42, v42")
    p("v_cvt_pk_bf16_f32 v20, v40, v42\nv_lshlrev_b32 v40, 16, v20\nv_and_b32 v42, s81, v20")
    p("v_rcp_f32 v41, v40\nv_rcp_f32 v43, v42")
    p("v_fma_f32 v40, -v40, v41, 1.0\nv_fma_f32 v42, -v42, v43, 1.0\nv_fmac_f32 v41, v40, v41\nv_fmac_f32 v43, v42, v43")
    p("v_readlane_b32 s74, v41, 63\nv_readlane_b32 s76, v43, 63")
    for r in range(2):
        for k in range(4):
            p(f"v_lshlrev_b32 v{24+8*r+2*k}, 16, v{8+4*r+k}\nv_and_b32 v{25+8*r+2*k}, s81, v{8+4*r+k}")
    for r in range(2):
        for k in range(4):
            p(f"v_pk_mul_f32 {V(24+8*r+2*k,2)}, {V(24+8*r+2*k,2)}, s[{74+2*r}:{75+2*r}] op_sel_hi:[1,0]")
    for r in range(2):
        for k in range(4): p(f"v_cvt_pk_bf16_f32 v{8+4*r+k}, v{24+8*r+2*k}, v{25+8*r+2*k}")
    p(f"s_mul_i32 s13, s7, 2176\ns_add_u32 s13, s13, {LNB}\nv_add_u32 v20, s13, v2")
    p.lds("ds_write_b128 v20, v[8:11]"); p.lds("ds_write_b128 v20, v[12:15] offset:1088")
    p("v_mov_b32 v22, s74\nv_mov_b32 v23, s76\ns_lshl_b32 s13, s9, 2\ns_mov_b64 exec, 1")
    p.vmem(f"buffer_store_dwordx2 v[22:23], off, s[{SRS}:{SRS+3}], s13 {STORE_FLAGS}")
    p("s_mov_b64 exec, -1")
    p("v_bfe_u32 v20, v1, 2, 2\nv_sub_u32 v20, 3, v20\nv_mul_u32_u24 v20, 1088, v20\nv_lshrrev_b32 v21, 4, v1\nv_lshl_add_u32 v20, v21, 5, v20")
    p(f"v_and_b32 v21, 3, v1\nv_lshl_add_u32 v20, v21, 3, v20\ns_lshl_b32 s13, s7, 8\ns_add_u32 s13, s13, {LNB}\nv_add_u32 v20, s13, v20")
    p.wait(lg='all'); p("s_barrier")
    for ps in range(2):
        p.lds(f"ds_read_b64_tr_b16 {V(8+4*ps,2)}, v20 offset:{4*1088 + 128*ps}", f"t{ps}")
        p.lds(f"ds_read_b64_tr_b16 {V(10+4*ps,2)}, v20 offset:{128*ps}", f"t{ps}")
    p("s_lshl_b32 s13, s5, 13\ns_lshl_b32 s14, s7, 11\ns_add_u32 s13, s13, s14")
    for ps in range(2):
        p.wait(lg=f"t{ps}")
        p.vmem(f"buffer_store_dwordx4 {V(8+4*ps,4)}, v2, s[{SXT}:{SXT+3}], s13 offen offset:{1024*ps} {STORE_FLAGS}")
    p.wait(vm="par")
    p("s_bitcmp1_b32 s7, 1\ns_cselect_b32 s13, 0, 16\ns_lshl_b32 s72, s72, s13\ns_and_b32 s72, s72, 0xffff0000\nv_mov_b32 v16, s72")
    for k in range(4): p(f"v_lshlrev_b32 v{4+k}, 16, v{4+k}")
    exp_bf16(p, 16, 16, 17, 18)
    exp_bf16(p, 4, 4, 17, 18)
    p("v_mul_f32 v4, v4, v16\nv_mul_f32 v5, v5, v16")
    p("v_mul_f32 v4, 0xbfb8aa3b, v4\nv_mul_f32 v5, 0.15915494, v5")
    p("v_add_f32 v16, v16, v16")
    E1, E8, E128, VV, GG, JJ, TT = 24, 26, 28, 30, 34, 40, 56
    p(f"v_mul_f32 v{VV}, v6, v16\nv_mul_f32 v{VV+1}, v7, v16")
    for k, (E, sc) in enumerate(((E1, None), (E8, 3), (E128, 7))):
        m, ph = 17 + 2*k, 18 + 2*k
        if sc: p(f"v_ldexp_f32 v{m}, v4, {sc}\nv_ldexp_f32 v{ph}, v5, {sc}\nv_exp_f32 v{m}, v{m}\nv_fract_f32 v{ph}, v{ph}")
        else: p(f"v_exp_f32 v{m}, v4\nv_fract_f32 v{ph}, v5")
        p(f"v_cos_f32 v{E}, v{ph}\nv_sin_f32 v{E+1}, v{ph}")
    for k, E in enumerate((E1, E8, E128)):
        p(f"v_mul_f32 v{E}, v{E}, v{17+2*k}\nv_mul_f32 v{E+1}, v{E+1}, v{17+2*k}")
    p(f"s_mul_i32 s13, s7, {KG_WAVE}\nv_lshl_add_u32 v3, v1, 2, s13")
    tmp = [8, 9, 10, 11, 12, 13, 14, 15]; ti = [0]
    def put(row, src, neg=False):
        t = tmp[ti[0] % 8]; ti[0] += 1
        p(f"v_cvt_pk_bf16_f32 v{t}, v{src}, {'-' if neg else ''}v{src+1}")
        p.lds(f"ds_write_b32 v3, v{t} offset:{row*KG_ROW}")
    p("v_mov_b32 v8, 0x00003f80"); ti[0] = 1
    p.lds(f"ds_write_b32 v3, v8 offset:0")
    J = lambda j: E1 if j == 1 else JJ + 2*j
    put(1, E1); put(41, VV, True); put(8, E128)
    vcur, gcur = VV, E128
    pend = []
    TPS = [TT, TT+2, TT+4, TT+6]; tq = [0]
    def prod(row, a, b):
        d = TPS[tq[0] % 4]; tq[0] += 1
        f = cmul(p, d, a, b); pend.append((f, row, d))
    def flush():
        for f, row, d in pend: p(f)
        for f, row, d in pend: put(row, d)
        pend.clear()
    for step in range(1, 16):
        vn = VV + 2 if vcur == VV else VV
        gn = GG + 2 if gcur == GG else GG
        fs = [cmul(p, vn, vcur, E8), cmul(p, gn, gcur, E128)]
        if step <= 6: fs.append(cmul(p, J(step+1), J(step), E1))
        for f in fs: p(f)
        put(41 + step, vn, True)
        gi = step + 1
        if step <= 6: put(step + 1, J(step+1))
        grow = {2: 16, 3: 20, 4: 24, 5: 26, 6: 28, 7: 30}.get(gi, 24 + gi)
        put(grow, gn)
        vcur, gcur = vn, gn
        if gi >= 4 and gi <= 7: prod(grow + 1, gn, J(4)); flush()
        if gi == 2: p(f"v_mov_b32 v64, v{gn}\nv_mov_b32 v65, v{gn+1}")
        if gi == 3: p(f"v_mov_b32 v66, v{gn}\nv_mov_b32 v67, v{gn+1}")
        if step == 7:
            for j in range(1, 5): prod(8 + j, E128, J(j))
            flush()
        if step == 8:
            for j in range(5, 8): prod(8 + j, E128, J(j))
            flush()
        if step == 9:
            for k, j in enumerate((2, 4, 6)): prod(17 + k, 64, J(j))
            flush()
        if step == 10:
            for k, j in enumerate((2, 4, 6)): prod(21 + k, 66, J(j))
            flush()
    p(f"v_and_b32 v4, 15, v1\nv_mul_u32_u24 v4, {KG_ROW}, v4\nv_lshrrev_b32 v5, 4, v1\nv_lshl_add_u32 v4, v5, 4, v4\nv_add_u32 v4, s13, v4")
    p.wait(lg='all')
    for s in range(4):
        p.lds(f"ds_read_b128 {V(24+16*s,4)}, v4 offset:{41*KG_ROW + 64*s}", f"k{s}")
        for T in range(3): p.lds(f"ds_read_b128 {V(28+16*s+4*T,4)}, v4 offset:{16*T*KG_ROW + 64*s}", f"k{s}")
    for s in range(4):
        p.wait(lg=f"k{s}")
        for T in range(3):
            acc = V(8 + 4*T, 4)
            p(f"v_mfma_f32_16x16x32_bf16 {acc}, {V(28+16*s+4*T,4)}, {V(24+16*s,4)}, {acc if s else 0}")
    p("v_and_b32 v4, 15, v1")
    p("v_lshrrev_b32 v6, 1, v5\nv_lshlrev_b32 v6, 8, v6\nv_and_b32 v7, 1, v5\nv_lshl_add_u32 v6, v7, 3, v6\nv_lshl_add_u32 v6, v4, 4, v6")
    p("v_cmp_gt_u32 vcc, 2, v5\nv_lshlrev_b32 v20, 2, v4\nv_lshlrev_b32 v21, 3, v4\nv_cndmask_b32 v20, v20, v21, vcc\nv_lshl_add_u32 v20, v5, 7, v20")
    p("v_mov_b32 v21, 64\nv_cndmask_b32 v21, v21, 4, vcc\nv_add_u32 v21, v21, v20")
    p("v_lshlrev_b32 v22, 1, v4\nv_lshl_add_u32 v22, v5, 7, v22")
    p("v_add_u32 v23, s13, v2")
    p("s_mul_i32 s14, s8, 1536")
    lab = p.newlabel("Lk1even"); lab2 = p.newlabel("Lk1join")
    p(f"s_bitcmp1_b32 s7, 0\ns_cbranch_scc0 {lab}")
    for T in range(3): p(f"ds_write_b128 v23, {V(8+4*T,4)} offset:{1024*T}")
    p("s_waitcnt lgkmcnt(0)\ns_barrier")
    p(f"s_branch {lab2}")
    p.label(lab)
    p("s_barrier")
    for T in range(3): p(f"ds_read_b128 {V(24+4*T,4)}, v23 offset:{KG_WAVE + 1024*T}")
    p("s_waitcnt lgkmcnt(0)")
    for k in range(6): p(f"v_pk_add_f32 {V(8+2*k,2)}, {V(8+2*k,2)}, {V(24+2*k,2)}")
    for k in range(6): p(f"v_cvt_pk_bf16_f32 v{24+k}, v{8+2*k}, v{9+2*k}")
    S = f"s[{SKQ}:{SKQ+3}], s14 offen"
    p(f"buffer_store_dwordx2 v[24:25], v6, {S} {STORE_FLAGS}")
    p(f"buffer_store_dword v26, v20, {S} offset:512 {STORE_FLAGS}\nbuffer_store_dword v27, v21, {S} offset:512 {STORE_FLAGS}")
    p(f"buffer_store_short v28, v22, {S} offset:1024 {STORE_FLAGS}\nbuffer_store_short_d16_hi v28, v22, {S} offset:1056 {STORE_FLAGS}")
    p(f"buffer_store_short v29, v22, {S} offset:1088 {STORE_FLAGS}\nbuffer_store_short_d16_hi v29, v22, {S} offset:1120 {STORE_FLAGS}")
    p.label(lab2)
    if PREFETCH_W2:
        p("s_mul_i32 s13, s4, 57344\ns_mul_i32 s14, s7, 14336\ns_add_u32 s13, s13, s14")
        for g in range(4):
            for i in range(4 if g < 3 else 2):
                p(f"buffer_load_dwordx4 v[32:35], v2, s[{SW2}:{SW2+3}], s13 offen offset:{1024*i}")
            if g < 3: p("s_add_u32 s13, s13, 4096")
    p("s_endpgm"); p.vm = []; p.lg = []

PREFETCH_W2 = True
G2_D = 4
def gemm2(p):
    SH, SW, SX, SO, SY, SRS, SFL = 44, 48, 52, 56, 60, 64, 68
    D = G2_D
    vWE, vWO, vH0, vH1, vTA, vXO, vRS, vXV, vA, vACC, vH = 2, 3, 4, 5, 6, 8, 9, 12, 24, 64, 128
    PW = 17408; YB = 4 * PW
    p("s_lshr_b32 s5, s4, 3\ns_lshl_b32 s6, s3, 2\ns_add_u32 s5, s5, s6")
    p("s_and_b32 s4, s4, 7")
    p("s_mul_i32 s6, s4, 14\ns_lshr_b32 s6, s6, 3")
    p("v_lshrrev_b32 v10, 3, v1\nv_lshlrev_b32 v10, 12, v10\nv_and_b32 v11, 7, v1")
    p(f"v_lshl_add_u32 v{vWE}, v11, 4, v10\nv_xor_b32 v{vWO}, 64, v{vWE}")
    p(f"v_lshlrev_b32 v{vH0}, 4, v1\nv_add_u32 v{vH1}, 114688, v{vH0}")
    p("s_mul_i32 s8, s7, 458752\ns_lshl_b32 s9, s4, 7\ns_add_u32 s8, s8, s9")
    p("s_mul_i32 s9, s5, 224\ns_mul_i32 s10, s7, 28\ns_add_u32 s9, s9, s10\ns_lshl_b32 s9, s9, 10")
    p(f"s_mul_i32 s10, s7, {PW}")
    p("s_waitcnt lgkmcnt(0)")
    srd(p, SW, PW2, 1792 * 1024); srd(p, SH, PWS, H_SZ, H_OFF)
    def issue(n):
        p(f"s_lshl_b32 s11, s6, 15\ns_add_u32 s11, s11, s8\ns_add_u32 m0, s10, {(n % D) * 4096}\ns_lshl_b32 s12, s6, 11\ns_add_u32 s12, s12, s9")
        for i in range(4):
            p.vmem(f"buffer_load_dwordx4 v{vWO if i & 1 else vWE}, s[{SW}:{SW+3}], s11 offen offset:{1024*i} lds", f"W{n}")
        for nt in range(2):
            for t in range(2):
                p.vmem(f"buffer_load_dwordx4 {V(vH + (n % D)*16 + 8*t + 4*nt, 4)}, v{vH0+nt}, s[{SH}:{SH+3}], s12 offen offset:{1024*t}", f"H{n}")
        p("s_add_u32 s6, s6, 1\ns_cmp_eq_u32 s6, 14\ns_cselect_b32 s6, 0, s6")
    for n in range(D): issue(n)
    p("v_bfe_u32 v10, v1, 2, 2\nv_lshrrev_b32 v11, 5, v1\nv_lshlrev_b32 v11, 7, v11\nv_lshl_add_u32 v11, v10, 10, v11")
    p("v_and_b32 v12, 1, v1\nv_lshl_add_u32 v11, v12, 3, v11\nv_bfe_u32 v12, v1, 4, 1\nv_bfe_u32 v13, v1, 1, 1\nv_lshl_add_u32 v12, v12, 1, v13")
    p(f"v_lshl_add_u32 v11, v12, 4, v11\nv_add_u32 v11, s10, v11\nv_and_b32 v10, 1, v10\nv_lshl_add_u32 v{vTA}, v10, 6, v11")
    p(f"v_xor_b32 v10, 1, v10\nv_lshl_add_u32 v{vTA+1}, v10, 6, v11")
    srd(p, SX, PX, 2048 * 1024); srd(p, SO, POUT, 2048 * 1024); srd(p, SY, PWS, Y_SZ, Y_OFF)
    srd(p, SRS, PWS, RS_SZ, RS_OFF); srd(p, SFL, PWS, FL_SZ, FL_OFF)
    p(f"v_and_b32 v10, 15, v1\nv_lshrrev_b32 v11, 4, v1\nv_lshlrev_b32 v{vXO}, 10, v10\nv_lshl_add_u32 v{vXO}, v11, 4, v{vXO}\nv_lshlrev_b32 v10, 2, v10")
    p("s_lshl_b32 s13, s5, 2\ns_add_u32 s13, s13, s7\ns_lshl_b32 s14, s13, 6\ns_lshl_b32 s13, s13, 14\ns_lshl_b32 s15, s4, 7\ns_add_u32 s13, s13, s15")
    def rd(n):
        for t in range(2):
            for mt in range(2):
                for u in range(2):
                    p.lds(f"ds_read_b64_tr_b16 {V(vA + (n & 1)*16 + 8*t + 4*mt + 2*u, 2)}, v{vTA+mt} offset:{(n % D)*4096 + (4*t + 2*u)*128}", f"R{n}")
    p.wait(vm="W0"); rd(0)
    for n in range(14):
        if n + 1 < 14:
            p.wait(vm=f"W{n+1}"); rd(n + 1)
        p.wait(vm=f"H{n}", lg=f"R{n}")
        for t in range(2):
            for mt in range(2):
                for nt in range(2):
                    acc = V(vACC + 32*mt + 16*nt, 16)
                    p(f"v_mfma_f32_32x32x16_bf16 {acc}, {V(vA + (n & 1)*16 + 8*t + 4*mt, 4)}, {V(vH + (n % D)*16 + 8*t + 4*nt, 4)}, {acc if (n or t) else 0}")
        if n + D < 14: issue(n + D)
        if n + D == 14:
            p.vmem(f"buffer_load_dword v{vRS}, v10, s[{SRS}:{SRS+3}], s14 offen", "e")
            for i in range(2):
                p.vmem(f"buffer_load_dwordx4 {V(vXV+4*i,4)}, v{vXO}, s[{SX}:{SX+3}], s13 offen offset:{64*i}", "e")
    lab = p.newlabel("Lpoll")
    p("v_and_b32 v10, 31, v1\nv_lshlrev_b32 v10, 2, v10\ns_lshl_b32 s15, s4, 7")
    lab2 = p.newlabel("Lpolldone")
    p("s_mov_b32 s11, 0")
    p.label(lab)
    p(f"buffer_load_dword v11, v10, s[{SFL}:{SFL+3}], s15 offen sc1\ns_add_u32 s11, s11, 1\ns_cmp_gt_u32 s11, 0x40000\ns_cbranch_scc1 {lab2}")
    p(f"s_waitcnt vmcnt(0)\nv_cmp_eq_u32 vcc, 0, v11")
    p(f"s_cbranch_vccnz {lab}")
    p.label(lab2)
    p("s_waitcnt vmcnt(0)")
    p.vm = []
    p("s_lshl_b32 s15, s5, 16\ns_lshl_b32 s11, s4, 13\ns_add_u32 s15, s15, s11\ns_lshl_b32 s11, s7, 11\ns_add_u32 s15, s15, s11")
    for i in range(2):
        p.vmem(f"buffer_load_dwordx4 {V(vA+4*i,4)}, v{vH0}, s[{SY}:{SY+3}], s15 offen offset:{1024*i} sc1", "y")
    p("v_and_b32 v10, 31, v1\nv_mul_u32_u24 v10, 272, v10\nv_lshrrev_b32 v11, 5, v1\nv_lshl_add_u32 v10, v11, 4, v10\nv_add_u32 v10, s10, v10")
    for nt in range(2):
        for mt in range(2):
            for q in range(4):
                p.lds(f"ds_write_b128 v10, {V(vACC + 32*mt + 16*nt + 4*q, 4)} offset:{nt*32*272 + mt*128 + q*32}")
    p(f"v_lshrrev_b32 v10, 3, v1\nv_mul_u32_u24 v10, 144, v10\nv_and_b32 v11, 7, v1\nv_lshl_add_u32 v10, v11, 4, v10\ns_mul_i32 s11, s7, 2304\ns_add_u32 s11, s11, {YB}\nv_add_u32 v10, s11, v10")
    p.wait(vm="y")
    for i in range(2): p.lds(f"ds_write_b128 v10, {V(vA+4*i,4)} offset:{i*1152}")
    p("v_and_b32 v10, 15, v1\nv_mul_u32_u24 v10, 272, v10\nv_lshrrev_b32 v11, 4, v1\nv_lshl_add_u32 v10, v11, 5, v10\ns_mul_i32 s11, s7, 4352\nv_add_u32 v10, s11, v10")
    p(f"v_bfe_u32 v20, v1, 2, 2\nv_lshl_add_u32 v11, v11, 3, v20\nv_mul_u32_u24 v11, 144, v11\nv_and_b32 v20, 3, v1\nv_lshl_add_u32 v11, v20, 3, v11\ns_lshl_b32 s11, s7, 5\ns_add_u32 s11, s11, {YB}\nv_add_u32 v11, s11, v11")
    p("s_mov_b32 s81, 0xffff0000")
    p.wait(lg='all'); p("s_barrier")
    for i in range(2):
        for u in range(2): p.lds(f"ds_read_b64_tr_b16 {V(vA+4*i+2*u,2)}, v11 offset:{(32*i + 4*u)*144}", "yy")
    for i in range(2):
        for q in range(4):
            for hf in range(2):
                p.lds(f"ds_read_b128 {V(64+32*i+8*q+4*hf,4)}, v10 offset:{q*PW + i*128 + hf*16}", f"P{i}{q}")
    p.wait(lg="yy")
    for i in range(2):
        for k in range(4):
            x, y, t = vXV+4*i+k, vA+4*i+k, 32+8*i+2*k
            p(f"v_lshlrev_b32 v{t}, 16, v{x}\nv_and_b32 v{t+1}, s81, v{x}\nv_lshlrev_b32 v20, 16, v{y}\nv_and_b32 v21, s81, v{y}")
            p(f"v_pk_add_f32 {V(t,2)}, {V(t,2)}, v[20:21]\nv_cvt_pk_bf16_f32 v{x}, v{t}, v{t+1}")
            p(f"v_lshlrev_b32 v{t}, 16, v{x}\nv_and_b32 v{t+1}, s81, v{x}")
    for i in range(2):
        b = 64 + 32*i
        p.wait(lg=f"P{i}1")
        for k in range(4): p(f"v_pk_add_f32 {V(b+2*k,2)}, {V(b+2*k,2)}, {V(b+8+2*k,2)}")
        p.wait(lg=f"P{i}3")
        for k in range(4): p(f"v_pk_add_f32 {V(b+16+2*k,2)}, {V(b+16+2*k,2)}, {V(b+24+2*k,2)}")
        for k in range(4): p(f"v_pk_add_f32 {V(b+2*k,2)}, {V(b+2*k,2)}, {V(b+16+2*k,2)}")
        for k in range(4): p(f"v_pk_mul_f32 {V(b+2*k,2)}, {V(b+2*k,2)}, {V(vRS-1,2)} op_sel:[0,1]")
        for k in range(4): p(f"v_cvt_pk_bf16_f32 v{b+8+k}, v{b+2*k}, v{b+2*k+1}")
        for k in range(4): p(f"v_lshlrev_b32 v{b+2*k}, 16, v{b+8+k}\nv_and_b32 v{b+2*k+1}, s81, v{b+8+k}")
        for k in range(4): p(f"v_pk_add_f32 {V(b+2*k,2)}, {V(b+2*k,2)}, {V(32+8*i+2*k,2)}")
        for k in range(4): p(f"v_cvt_pk_bf16_f32 v{b+8+k}, v{b+2*k}, v{b+2*k+1}")
        p.vmem(f"buffer_store_dwordx4 {V(b+8,4)}, v{vXO}, s[{SO}:{SO+3}], s13 offen offset:{64*i}")
    p("s_endpgm"); p.vm = []; p.lg = []

CB = {1: 0, 5: 260, 3: 520, 0: 780, 2: 1041, 6: 1301, 4: 1561, 7: 1820}
CP_SZ = 2078 * 16
XBUF = 2 * CP_SZ; XB_SZ = 286 * 16
KQB = XBUF + 2 * XB_SZ
def conv(p):
    SXT, SKQ, SY, SFL = 44, 48, 52, 56
    p("s_lshl_b32 s5, s3, 5\ns_add_u32 s5, s5, s4")
    p("s_lshr_b32 s8, s7, 1\ns_and_b32 s9, s7, 1")
    p("s_lshl_b32 s6, s5, 1\ns_add_u32 s6, s6, s8")
    p("s_lshl_b32 s10, s6, 4\nv_lshlrev_b32 v2, 13, v1\nv_add_u32 v2, s10, v2")
    p("v_lshlrev_b32 v3, 4, v1")
    p(f"s_mul_i32 s10, s8, {XB_SZ}\ns_add_u32 s10, s10, {XBUF}")
    p(f"s_mul_i32 s11, s8, {CP_SZ}")
    p(f"s_lshl_b32 s12, s8, 11\ns_add_u32 s12, s12, {KQB}")
    p("s_lshl_b32 s13, s5, 2")
    p("s_waitcnt lgkmcnt(0)")
    srd(p, SKQ, PWS, KQ_SZ, KQ_OFF); srd(p, SXT, PWS, XT_SZ, XT_OFF)
    p("s_mul_i32 s14, s6, 1536\ns_lshl_b32 s15, s9, 10\ns_add_u32 s14, s14, s15\ns_add_u32 m0, s12, s15")
    p.vmem(f"buffer_load_dwordx4 v3, s[{SKQ}:{SKQ+3}], s14 offen lds", "kq")
    p("s_lshl_b32 s14, s9, 20\ns_lshl_b32 s15, s9, 11\ns_add_u32 s15, s15, s10\ns_add_u32 m0, s15, 480")
    p.vmem(f"buffer_load_dwordx4 v2, s[{SXT}:{SXT+3}], s14 offen lds", "x")
    p("s_add_u32 s14, s14, 0x80000\ns_add_u32 m0, s15, 1504")
    p.vmem(f"buffer_load_dwordx4 v2, s[{SXT}:{SXT+3}], s14 offen lds", "x")
    p(f"s_load_dword s72, s[{PDS}:{PDS+1}], s13")
    srd(p, SY, PWS, Y_SZ, Y_OFF); srd(p, SFL, PWS, FL_SZ, FL_OFF)
    lo = [CB[c] & 255 for c in range(8)]; hi = [CB[c] >> 8 for c in range(8)]
    pk = lambda b: b[0] | b[1] << 8 | b[2] << 16 | b[3] << 24
    p(f"s_mov_b32 s60, {pk(lo[:4])}\ns_mov_b32 s61, {pk(hi[:4])}\nv_mov_b32 v4, {pk(lo[4:])}\nv_mov_b32 v5, {pk(hi[4:])}")
    def lut(d, idx, t):
        p(f"v_or_b32 v{t}, 0x0c0c0c00, v{idx}\nv_perm_b32 v{d}, v4, s60, v{t}\nv_perm_b32 v{t}, v5, s61, v{t}\nv_lshl_or_b32 v{d}, v{t}, 8, v{d}")
    for k in range(4): p(f"v_mov_b32 v{8+k}, 0")
    p("v_and_b32 v6, 7, v1"); lut(7, 6, 12)
    p(f"v_lshrrev_b32 v6, 3, v1\nv_add_u32 v7, v7, v6\nv_lshlrev_b32 v7, 4, v7\nv_add_u32 v7, s11, v7")
    p("v_add_u32 v6, s10, v3")
    p("s_mov_b64 exec, 0x1ff"); p.lds("ds_write_b128 v7, v[8:11]")
    p("s_mov_b64 exec, 0x3fffffff"); p.lds("ds_write_b128 v6, v[8:11]")
    p("s_mov_b64 exec, -1")
    p("v_and_b32 v12, 62, v1\nv_lshlrev_b32 v12, 1, v12\ns_lshl_b32 s14, s9, 7\ns_add_u32 s14, s14, s12\nv_add_u32 v12, s14, v12")
    p("v_and_b32 v13, 1, v1\nv_cmp_eq_u32 vcc, 1, v13")
    p("v_mov_b32 v13, 0x01000100\nv_mov_b32 v14, 0x03020100\nv_mov_b32 v15, 0x03020302\nv_mov_b32 v16, 0x05040504")
    p("v_cndmask_b32 v17, v13, v15, vcc\nv_cndmask_b32 v18, v14, v16, vcc\nv_cndmask_b32 v19, v15, v16, vcc")
    p("v_cmp_gt_u32 vcc, 32, v1\nv_lshlrev_b32 v20, 3, v1\nv_add_u32 v20, 256, v20\nv_add_u32 v21, 4, v20\nv_add_u32 v22, 8, v3")
    p("v_cndmask_b32 v20, v20, v3, vcc\nv_cndmask_b32 v21, v21, v22, vcc")
    p("v_mov_b32 v22, 0x05040302\nv_mov_b32 v23, 0x07060504")
    p("v_cndmask_b32 v24, v13, v14, vcc\nv_cndmask_b32 v25, v22, v23, vcc\nv_mov_b32 v26, v24\nv_mov_b32 v27, v25")
    lab = p.newlabel("Lcp1")
    p(f"s_cmp_eq_u32 s9, 1\ns_cbranch_scc1 {lab}")
    p("v_lshlrev_b32 v20, 2, v1\nv_add_u32 v20, 768, v20\nv_mov_b32 v21, v20\nv_mov_b32 v24, v13\nv_mov_b32 v25, v14\nv_mov_b32 v26, v15\nv_mov_b32 v27, v16")
    p.label(lab)
    p("v_add_u32 v20, s12, v20\nv_add_u32 v21, s12, v21")
    p(f"s_lshl_b32 s14, s9, 10\ns_add_u32 s15, s11, s14\nv_add_u32 v28, s15, v3\ns_sub_u32 s15, s11, s14\ns_add_u32 s15, s15, 1024\nv_add_u32 v29, s15, v3")
    p.wait(vm="kq", lg='all'); p("s_barrier")
    p.lds("ds_read2_b32 v[32:33], v12 offset0:0 offset1:1" .replace("v12", "v30"), "a") if False else None
    p("v_add_u32 v12, 1024, v12")
    p.lds("ds_read2_b32 v[32:33], v12 offset0:0 offset1:1", "a")
    p.lds("ds_read2_b32 v[34:35], v20 offset0:0 offset1:1", "b")
    p.lds("ds_read2_b32 v[36:37], v21 offset0:0 offset1:1", "b")
    p.wait(lg="a")
    p("v_perm_b32 v40, v33, v32, v17\nv_perm_b32 v42, v33, v32, v18\nv_perm_b32 v43, v33, v32, v19\nv_mov_b32 v41, v40")
    p.lds(f"ds_write_b128 v28, v[40:43] offset:{(CB[0] + 2 + 128)*16}")
    p.wait(lg="b")
    p("v_perm_b32 v44, v35, v34, v24\nv_perm_b32 v45, v35, v34, v25\nv_perm_b32 v46, v37, v36, v26\nv_perm_b32 v47, v37, v36, v27")
    p.lds(f"ds_write_b128 v29, v[44:47] offset:{(CB[0] + 2)*16}")
    p("s_lshl_b32 s14, s9, 11\ns_add_u32 s14, s14, s11\nv_add_u32 v28, s14, v3")
    p("v_and_b32 v6, 15, v1\nv_add_u32 v12, 1, v6\nv_and_b32 v13, 7, v12"); lut(7, 13, 14)
    p("v_lshrrev_b32 v12, 3, v12\nv_lshrrev_b32 v13, 4, v1\nv_sub_u32 v12, v12, v13\nv_add3_u32 v7, v7, v12, 3\nv_lshlrev_b32 v7, 4, v7")
    p("s_lshl_b32 s14, s9, 8\ns_add_u32 s15, s14, s11\nv_add_u32 v7, s15, v7")
    p("v_lshl_add_u32 v6, v6, 1, v13\nv_lshlrev_b32 v6, 4, v6\ns_sub_u32 s15, s10, s14\ns_add_u32 s15, s15, 256\nv_add_u32 v6, s15, v6")
    p.wait(lg='all'); p("s_barrier")
    for i in range(2):
        w = 32 + 32*i
        p.lds(f"ds_read_b128 {V(w,4)}, v28 offset:{(CB[0] + 1 + 64*i)*16}", f"s{i}")
        p.lds(f"ds_read_b128 {V(w+4,4)}, v28 offset:{(CB[0] + 2 + 64*i)*16}", f"s{i}")
    for i in range(2):
        w = 32 + 32*i; ws, oa, ob = w + 8, w + 14, w + 20
        off = lambda c: (CB[c] + 1 + 64*i) * 16
        p.wait(lg=f"s{i}")
        p.lds(f"ds_write_b128 v28, {V(w+2,4)} offset:{off(4)}")
        for k in range(6): p(f"v_alignbit_b32 v{oa+k}, v{w+k+1}, v{w+k}, 16")
        p.lds(f"ds_write_b128 v28, {V(oa,4)} offset:{off(1)}")
        p.lds(f"ds_write_b128 v28, {V(oa+2,4)} offset:{off(5)}")
        for k in range(6): p(f"v_mov_b32 v{ws+k}, v{w+k+1}")
        p.lds(f"ds_write_b128 v28, {V(ws,4)} offset:{off(2)}")
        p.lds(f"ds_write_b128 v28, {V(ws+2,4)} offset:{off(6)}")
        for k in range(6): p(f"v_alignbit_b32 v{ob+k}, v{w+k+2}, v{w+k+1}, 16")
        p.lds(f"ds_write_b128 v28, {V(ob,4)} offset:{off(3)}")
        p.lds(f"ds_write_b128 v28, {V(ob+2,4)} offset:{off(7)}")
    p.wait(vm='all', lg='all'); p("s_barrier")
    vACC, vF = 32, 64
    def rd(cc):
        b = vF + 64 * (cc & 1)
        for k in range(8):
            p.lds(f"ds_read_b128 {V(b+4*k,4)}, v6 offset:{192 - 64*cc + 512*k}", f"B{cc}")
            if k == 0: p.lds(f"ds_read_b128 {V(b+32,4)}, v7 offset:{64*cc}", f"B{cc}")
        for u in range(1, 8):
            p.lds(f"ds_read_b128 {V(b+32+4*u,4)}, v7 offset:{64*cc + 512*u}", f"A{cc}_{u}")
    rd(0)
    for cc in range(4):
        b = vF + 64 * (cc & 1)
        for u in range(8):
            p.wait(lg=f"A{cc}_{u}" if u else f"B{cc}")
            if u == 2 and cc < 3: pass
            for t in range(u, 8):
                acc = V(vACC + 4*t, 4)
                p(f"v_mfma_f32_16x16x32_bf16 {acc}, {V(b+32+4*u,4)}, {V(b+4*(t-u),4)}, {acc if (cc or u) else 0}")
            if u == 1 and cc < 3:
                p.wait(lg='all'); rd(cc + 1)
    p("s_lshl_b32 s14, s7, 12\nv_add_u32 v28, s14, v3\ns_xor_b32 s14, s14, 4096\nv_add_u32 v29, s14, v3")
    p("v_and_b32 v12, 15, v1\nv_lshrrev_b32 v13, 5, v1\nv_lshl_add_u32 v14, v12, 1, v13\nv_lshlrev_b32 v14, 4, v14\nv_bfe_u32 v13, v1, 4, 1\nv_xor_b32 v13, 1, v13\nv_lshl_add_u32 v14, v13, 3, v14")
    p("s_lshl_b32 s14, s9, 11\ns_add_u32 s14, s14, s10\nv_add_u32 v14, s14, v14")
    for k in range(4): p.lds(f"ds_read_b64 {V(16+2*k,2)}, v14 offset:{480 + 512*k}", "xn")
    p("v_lshrrev_b32 v13, 2, v12\nv_lshlrev_b32 v13, 16, v13\nv_and_b32 v12, 3, v12\nv_lshl_add_u32 v13, v12, 5, v13\nv_lshrrev_b32 v12, 4, v1\nv_lshl_add_u32 v13, v12, 3, v13")
    p("s_lshl_b32 s14, s9, 20\ns_lshl_b32 s15, s6, 7\ns_add_u32 s14, s14, s15")
    p("s_bitcmp1_b32 s7, 1\ns_cselect_b32 s15, 0, 16\ns_lshl_b32 s72, s72, s15\ns_and_b32 s72, s72, 0xffff0000\ns_mov_b32 s81, 0xffff0000")
    p("s_barrier")
    lab, lab2 = p.newlabel("Lr"), p.newlabel("Lr")
    p(f"s_cmp_eq_u32 s9, 1\ns_cbranch_scc1 {lab}")
    p("s_nop 7")
    for k in range(4): p(f"ds_write_b128 v28, {V(vACC+16+4*k,4)} offset:{1024*k}")
    p(f"s_branch {lab2}")
    p.label(lab)
    p("s_nop 7")
    for k in range(4): p(f"ds_write_b128 v28, {V(vACC+4*k,4)} offset:{1024*k}")
    for k in range(16): p(f"v_mov_b32 v{vACC+k}, v{vACC+16+k}")
    p.label(lab2)
    p("s_waitcnt lgkmcnt(0)\ns_barrier"); p.lg = []
    for k in range(4): p.lds(f"ds_read_b128 {V(64+4*k,4)}, v29 offset:{1024*k}", f"q{k}")
    for k in range(4):
        a = 80 + 4*k
        p(f"v_and_b32 v{a}, s81, v{17+2*k}\nv_lshlrev_b32 v{a+1}, 16, v{17+2*k}\nv_and_b32 v{a+2}, s81, v{16+2*k}\nv_lshlrev_b32 v{a+3}, 16, v{16+2*k}")
        p(f"v_pk_mul_f32 {V(a,2)}, {V(a,2)}, s[72:73] op_sel_hi:[1,0]\nv_pk_mul_f32 {V(a+2,2)}, {V(a+2,2)}, s[72:73] op_sel_hi:[1,0]")
        p(f"v_cvt_pk_bf16_f32 v{16+2*k}, v{a}, v{a+1}\nv_cvt_pk_bf16_f32 v{17+2*k}, v{a+2}, v{a+3}")
        p(f"v_lshlrev_b32 v{a}, 16, v{16+2*k}\nv_and_b32 v{a+1}, s81, v{16+2*k}\nv_lshlrev_b32 v{a+2}, 16, v{17+2*k}\nv_and_b32 v{a+3}, s81, v{17+2*k}")
    for k in range(4):
        a, y, q = 80 + 4*k, vACC + 4*k, 64 + 4*k
        p.wait(lg=f"q{k}")
        p(f"v_pk_add_f32 {V(y,2)}, {V(y,2)}, {V(q,2)}\nv_pk_add_f32 {V(y+2,2)}, {V(y+2,2)}, {V(q+2,2)}")
        p(f"v_cvt_pk_bf16_f32 v{q}, v{y}, v{y+1}\nv_cvt_pk_bf16_f32 v{q+1}, v{y+2}, v{y+3}")
        p(f"v_lshlrev_b32 v{y}, 16, v{q}\nv_and_b32 v{y+1}, s81, v{q}\nv_lshlrev_b32 v{y+2}, 16, v{q+1}\nv_and_b32 v{y+3}, s81, v{q+1}")
        p(f"v_pk_add_f32 {V(y,2)}, {V(y,2)}, {V(a,2)}\nv_pk_add_f32 {V(y+2,2)}, {V(y+2,2)}, {V(a+2,2)}")
        p(f"v_cvt_pk_bf16_f32 v{q}, v{y}, v{y+1}\nv_cvt_pk_bf16_f32 v{q+1}, v{y+2}, v{y+3}")
        p.vmem(f"buffer_store_dwordx2 {V(q,2)}, v13, s[{SY}:{SY+3}], s14 offen sc1")
        if k < 3: p("s_add_u32 s14, s14, 0x40000")
    p.wait(vm='all'); p("s_barrier")
    lab = p.newlabel("Lcend")
    p(f"s_cmp_lg_u32 s7, 0\ns_cbranch_scc1 {lab}")
    p("v_mov_b32 v8, 1\ns_mov_b64 exec, 1")
    p(f"buffer_store_dword v8, off, s[{SFL}:{SFL+3}], s13 sc1")
    p.label(lab)
    p("s_endpgm"); p.vm = []; p.lg = []

def desc(p, name, vgpr):
    p(f'.section .rodata,"a"\n.p2align 6\n.amdhsa_kernel {name}')
    p(f".amdhsa_next_free_vgpr {vgpr}\n.amdhsa_next_free_sgpr 96\n.amdhsa_accum_offset {vgpr}\n.amdhsa_group_segment_fixed_size 0")
    p(".amdhsa_float_denorm_mode_32 3")
    p(".amdhsa_kernarg_size 104\n.amdhsa_user_sgpr_count 2\n.amdhsa_user_sgpr_kernarg_segment_ptr 1\n.amdhsa_system_sgpr_workgroup_id_x 1\n.end_amdhsa_kernel")

def build():
    p = Prog()
    p.L.append(f"; @launch kernel=s4d_stage1_kernel grid=(512,1,1) block=(256,1,1) lds={LDS}")
    p.L.append(f"; @launch kernel=s4d_stage2_kernel grid=(512,1,1) block=(256,1,1) lds={LDS}")
    p('.amdgcn_target "amdgcn-amd-amdhsa--gfx950"\n.text')
    entry(p, "s4d_stage1_kernel", "Lside1", "Lend1")
    gemm1(p, "Lend1")
    p.label("Lside1"); side1(p)
    p.label("Lend1"); p("s_endpgm")
    entry(p, "s4d_stage2_kernel", "Lconv", "Lend2")
    gemm2(p)
    p.label("Lconv"); conv(p)
    p.label("Lend2"); p("s_endpgm")
    desc(p, "s4d_stage1_kernel", 256); desc(p, "s4d_stage2_kernel", 256)
    return p.text()

if __name__ == "__main__":
    out = sys.argv[1] if len(sys.argv) > 1 else f"cdna_kernels/{NAME}.s"
    open(out, "w").write(build())
    print("wrote", out)
```
